```python
import torch

def _softmax(x, axis=-1):
    return torch.softmax(x, dim=axis)
def _gelu(x):
    return torch.nn.functional.gelu(x, approximate="tanh")
def _silu(x):
    return torch.nn.functional.silu(x)
def _sigmoid(x):
    return torch.sigmoid(x)
def _layernorm(x, axis=-1, eps=1e-5):
    m = x.mean(dim=axis, keepdim=True)
    v = x.var(dim=axis, keepdim=True, unbiased=False)
    return (x - m) / torch.sqrt(v + eps)
def _scatter_add(tgt, idx, src, axis=0):
    return tgt.clone().index_add_(axis, idx, src)
def _segment_sum(src, seg, n):
    out = torch.zeros((n,) + src.shape[1:], dtype=src.dtype)
    return out.index_add_(0, seg, src)
def _pad(x, pw):
    flat = tuple(v for pair in reversed(pw) for v in pair)
    return torch.nn.functional.pad(x, flat)

kernel_name = 'interleave_layers__ssm_conv_h3__swiglu_ffn__prompt'

def setup_inputs():

    _w = (lambda a: (lambda t: t.to(torch.bfloat16) if t.is_floating_point() else t)(torch.as_tensor(a)))
    def _A_setup():
        B, S, D = 1, 2048, 448
        ks = 4
        return {
            "q": _w((lambda *s: torch.randn(*s, dtype=torch.bfloat16) * 0.05)(B, S, D)),
            "k": _w((lambda *s: torch.randn(*s, dtype=torch.bfloat16) * 0.8)(B, S, D)),
            "v": _w((lambda *s: torch.randn(*s, dtype=torch.bfloat16) * 0.8)(B, S, D)),
            "shift_k": _w((lambda *s: torch.randn(*s, dtype=torch.bfloat16) * 0.8)(D, ks) * 0.5),
            "ssm_k": _w((lambda *s: torch.randn(*s, dtype=torch.bfloat16) * 0.8)(D, S) * (1.0 / S ** 0.5)),
            "ssm_D": _w((lambda *s: torch.randn(*s, dtype=torch.bfloat16) * 0.8)(D)),
        }
    _A_in = _A_setup()

    def _B_setup():
        B, S, D, F = 1, 2048, 448, 1792
        return {
            "x": _w((lambda *s: torch.randn(*s, dtype=torch.bfloat16) * 0.05)(B, S, D)),
            "w_gate": _w((lambda *s: torch.randn(*s, dtype=torch.bfloat16) * 0.1)(D, F)),
            "w_up": _w((lambda *s: torch.randn(*s, dtype=torch.bfloat16) * 0.1)(D, F)),
            "w_down": _w((lambda *s: torch.randn(*s, dtype=torch.bfloat16) * 0.1)(F, D)),
        }
    _B_in = _B_setup()

    return {
        "A_q": _A_in["q"],
        "A_k": _A_in["k"],
        "A_v": _A_in["v"],
        "A_shift_k": _A_in["shift_k"],
        "A_ssm_k": _A_in["ssm_k"],
        "A_ssm_D": _A_in["ssm_D"],
        "B_x": _B_in["x"],
        "B_w_gate": _B_in["w_gate"],
        "B_w_up": _B_in["w_up"],
        "B_w_down": _B_in["w_down"],
    }

def reference(A_q, A_k, A_v, A_shift_k, A_ssm_k, A_ssm_D, B_x, B_w_gate, B_w_up, B_w_down):
    def _A_ref(q, k, v, shift_k, ssm_k, ssm_D):
        B, S, D = q.shape
        ks = shift_k.shape[-1]
        k_pad = _pad(k, ((0, 0), (ks - 1, 0), (0, 0)))
        k_shift = torch.zeros_like(k)
        for t in range(ks):
            k_shift = k_shift + k_pad[:, t:t + S, :] * shift_k[:, ks - 1 - t][None, None, :]
        kv = k_shift * v
        L = 2 * S
        kv_pad = _pad(kv, ((0, 0), (0, S), (0, 0)))
        kf_pad = _pad(ssm_k, ((0, 0), (0, S)))
        kv_f = (lambda x, axes=(-2,-1): torch.fft.rfft2(x.float(), dim=axes))(kv_pad[:, None, :, :], axes=(1, 2))
        kf_f = (lambda x, axes=(-2,-1): torch.fft.rfft2(x.float(), dim=axes))(kf_pad[:, None, :], axes=(1, 2))
        kf_f = (lambda x, *d: x.permute(*d))(kf_f, 1, 2, 0)
        y_f = kv_f * kf_f[None, :, :, :]
        y = (lambda x, s, axes=(-2,-1): torch.fft.irfft2(x, s=s, dim=axes).to(torch.bfloat16))(y_f, (1, L), axes=(1, 2))[:, 0, :S, :]
        y = y + kv * ssm_D[None, None, :]
        return q * y

    def _B_ref(x, w_gate, w_up, w_down):
        g = _silu(x @ w_gate)
        u = x @ w_up
        return (g * u) @ w_down

    x = A_q
    x = x + _A_ref(_layernorm(x, axis=-1), A_k, A_v, A_shift_k, A_ssm_k, A_ssm_D)
    x = x + _B_ref(_layernorm(x, axis=-1), B_w_gate, B_w_up, B_w_down)
    x = x + _A_ref(_layernorm(x, axis=-1), A_k, A_v, A_shift_k, A_ssm_k, A_ssm_D)
    x = x + _B_ref(_layernorm(x, axis=-1), B_w_gate, B_w_up, B_w_down)
    return x
```

```python
import re

class Asm:
    def __init__(self):
        self.items = []
        self._lab = 0
        Asm._uid = getattr(Asm, "_uid", 0) + 1
        self.uid = Asm._uid

    def __call__(self, s):
        for ln in s.split("\n"):
            ln = ln.strip()
            if ln:
                self.items.append(ln)

    def c(self, s):
        self.items.append("; " + s)

    def label(self, name):
        self.items.append(name + ":")

    def newlabel(self, base="L"):
        self._lab += 1
        return f"{base}_{self.uid}_{self._lab}"

    def raw(self, s):
        self.items.append(s)

    def text(self):
        out = []
        for it in self.items:
            if it.endswith(":") or it.startswith(".") or it.startswith(";"):
                out.append(it)
            else:
                out.append("    " + it)
        return "\n".join(out) + "\n"


REG = re.compile(r"\b([vas])(\d+)\b|\b([vas])\[(\d+):(\d+)\]")

def regs_of(tok):
    out = set()
    for m in REG.finditer(tok):
        if m.group(1):
            out.add((m.group(1), int(m.group(2))))
        else:
            for i in range(int(m.group(4)), int(m.group(5)) + 1):
                out.add((m.group(3), i))
    if re.search(r"\bvcc\b", tok):
        out.add(("s", "vcc"))
    if re.search(r"\bm0\b", tok):
        out.add(("s", "m0"))
    if re.search(r"\bexec\b", tok):
        out.add(("s", "exec"))
    return out

TRANS = ("v_exp_f32", "v_log_f32", "v_rcp_f32", "v_rsq_f32", "v_sqrt_f32", "v_sin_f32", "v_cos_f32")

def split_ops(line):
    line = line.split(";")[0].strip()
    parts = line.split(None, 1)
    op = parts[0]
    ops = []
    if len(parts) > 1:
        depth = 0
        cur = ""
        for ch in parts[1]:
            if ch == "[":
                depth += 1
            if ch == "]":
                depth -= 1
            if ch == "," and depth == 0:
                ops.append(cur.strip())
                cur = ""
            else:
                cur += ch
        ops.append(cur.strip())
    return op, ops

class Ins:
    __slots__ = ("line", "op", "kind", "w", "r", "passes", "srcc", "storedata", "isdpp", "ispermlane", "isreadlane", "vmem_sregs", "lds_dma", "ab")

def classify(line):
    op, ops = split_ops(line)
    I = Ins()
    I.line = line; I.op = op; I.w = set(); I.r = set(); I.passes = 0; I.srcc = set(); I.storedata = set()
    I.isdpp = False; I.ispermlane = False; I.isreadlane = False; I.vmem_sregs = set(); I.lds_dma = False; I.ab = set()
    base = op.replace("_e32", "").replace("_e64", "").replace("_dpp", "").replace("_sdwa", "")
    if op.startswith("v_mfma"):
        I.kind = "mfma"
        I.passes = 8 if "32x32" in op else 4
        I.w = regs_of(ops[0]); I.ab = regs_of(ops[1]) | regs_of(ops[2]); I.srcc = regs_of(ops[3]); I.r = I.ab | I.srcc
    elif op.startswith("v_"):
        I.kind = "trans" if base in TRANS else "valu"
        if op == "v_nop":
            pass
        elif op.startswith("v_cmp"):
            I.w = regs_of(ops[0]);
            for o in ops[1:]: I.r |= regs_of(o)
        elif op.startswith("v_permlane"):
            I.ispermlane = True
            I.w = regs_of(ops[0]) | regs_of(ops[1]); I.r = set(I.w)
        elif op.startswith("v_readfirstlane") or op.startswith("v_readlane"):
            I.isreadlane = True
            I.w = regs_of(ops[0])
            for o in ops[1:]: I.r |= regs_of(o)
        else:
            I.w = regs_of(ops[0])
            k = 1
            if base in ("v_add_co_u32", "v_sub_co_u32", "v_addc_co_u32", "v_subb_co_u32", "v_div_scale_f32"):
                I.w |= regs_of(ops[1]); k = 2
            for o in ops[k:]: I.r |= regs_of(o)
            if base in ("v_fmac_f32", "v_dot2c_f32_bf16", "v_writelane_b32") or "dpp" in line or "row_" in line or "quad_perm" in line:
                I.r |= regs_of(ops[0])
            if base == "v_cndmask_b32" and len(ops) == 3:
                I.r.add(("s", "vcc"))
        if "row_" in line or "quad_perm" in line or "wave_" in line or op.endswith("_dpp"):
            I.isdpp = True
    elif op.startswith("ds_"):
        I.kind = "ds"
        if op.startswith("ds_read") or op.startswith("ds_bpermute") or op.startswith("ds_swizzle") or op.startswith("ds_permute"):
            I.w = regs_of(ops[0])
            for o in ops[1:]: I.r |= regs_of(o)
        else:
            for o in ops: I.r |= regs_of(o)
    elif op.startswith("buffer_") or op.startswith("global_"):
        I.kind = "vmem"
        isld = "load" in op
        isatomic = "atomic" in op
        lds = bool(re.search(r"\blds\b", line)) or "load_lds" in op
        I.lds_dma = lds
        if op in ("buffer_wbl2", "buffer_inv"):
            pass
        elif isld and not lds:
            I.w = regs_of(ops[0])
            for o in ops[1:]: I.r |= regs_of(o)
        elif isld and lds:
            for o in ops: I.r |= regs_of(o)
        elif isatomic:
            for o in ops: I.r |= regs_of(o)
            if re.search(r"\bsc0\b", line):
                I.w = regs_of(ops[0])
        else:
            for o in ops: I.r |= regs_of(o)
            if "x4" in op or "x3" in op:
                I.storedata = regs_of(ops[0]) if op.startswith("buffer_") else regs_of(ops[1])
        I.vmem_sregs = {x for x in I.r if x[0] == "s"}
    elif op.startswith("s_"):
        I.kind = "salu"
        if op in ("s_nop", "s_waitcnt", "s_barrier", "s_endpgm", "s_sleep", "s_setprio") or op.startswith("s_cbranch") or op == "s_branch":
            pass
        elif op.startswith("s_cmp"):
            for o in ops: I.r |= regs_of(o)
        else:
            if ops:
                I.w = regs_of(ops[0])
                for o in ops[1:]: I.r |= regs_of(o)
    else:
        I.kind = "other"
    return I

def states(I):
    if I.op == "s_nop":
        return int(I.line.split()[1], 0) + 1
    return 1

def need(P, Cn):
    n = 0
    isv = lambda k: k in ("valu", "trans")
    vec = lambda S: {x for x in S if x[0] in "va"}
    sc = lambda S: {x for x in S if x[0] == "s"}
    if isv(P.kind):
        pw = vec(P.w)
        if Cn.kind == "mfma" and pw & Cn.r: n = max(n, 2)
        if P.kind == "trans" and isv(Cn.kind) and Cn.kind != "trans" and pw & Cn.r: n = max(n, 1)
        if P.kind == "trans" and Cn.kind == "trans" and pw & Cn.r: n = max(n, 1)
        if Cn.isreadlane and pw & Cn.r: n = max(n, 1)
        if Cn.ispermlane and pw & Cn.r: n = max(n, 2)
        if Cn.isdpp and pw & Cn.r: n = max(n, 2)
        ps = sc(P.w)
        if ps:
            if isv(Cn.kind) and ps & Cn.r: n = max(n, 2 if not Cn.isreadlane else 4)
            if Cn.kind == "vmem" and ps & Cn.r: n = max(n, 5)
            if Cn.kind == "salu" and ps & Cn.r: n = max(n, 1)
    if P.kind == "mfma":
        k = {4: (8, 6, 3), 8: (12, 10, 7)}[P.passes]
        if Cn.kind == "mfma":
            if P.w & Cn.ab: n = max(n, k[0])
            if P.w & Cn.srcc:
                if not (P.w == Cn.srcc and P.passes == Cn.passes): n = max(n, k[1])
            if P.w & Cn.w and not (P.w & Cn.srcc): n = max(n, k[1])
        else:
            if P.w & (Cn.r | Cn.w): n = max(n, k[0])
            if isv(Cn.kind) and (P.srcc & Cn.w): n = max(n, k[2])
            if Cn.kind in ("ds", "vmem") and (P.srcc & Cn.w): n = max(n, k[2])
    if P.kind == "vmem" and P.storedata:
        if P.storedata & Cn.w: n = max(n, 2)
    if P.kind == "salu" and ("s", "m0") in P.w and Cn.lds_dma: n = max(n, 1)
    if P.kind == "salu" and ("s", "exec") in P.w and Cn.kind == "mfma": n = max(n, 0)
    return n

def pad_hazards(items, window=24, verbose=False):
    out = []
    hist = []
    added = 0
    for it in items:
        s = it.strip()
        if not s or s.startswith(";") or s.endswith(":") or s.startswith("."):
            out.append(it)
            continue
        I = classify(s)
        req = 0
        dist = 0
        for P in reversed(hist[-window:]):
            n = need(P, I)
            if n > dist:
                req = max(req, n - dist)
            dist += states(P)
            if dist >= 20: break
        while req > 0:
            k = min(req, 16)
            nop = f"s_nop {k-1}"
            out.append(nop); hist.append(classify(nop)); req -= k; added += k
            if verbose: print("pad", k, "before", s)
        out.append(it)
        hist.append(I)
        if I.op in ("s_branch", "s_endpgm", "s_setpc_b64"):
            hist = []
    return out, added

def stamp(a, kern, slot, srd, wave_sreg=None, tmp_s=(90, 91, 92, 93), tmp_v=(250, 251, 252), onlywave=0, phi_sreg=None):
    from layout import TS
    s0, s1, s2_, s3 = tmp_s
    v0, v1, v2 = tmp_v
    lab = a.newlabel("ST")
    if wave_sreg is not None:
        a(f"s_cmp_eq_u32 s{wave_sreg}, {onlywave}")
        a(f"s_cbranch_scc0 {lab}")
    a(f"s_memrealtime s[{s0}:{s1}]")
    a(f"s_lshl_b32 s{s2_}, s2, 8")
    a(f"s_add_u32 s{s2_}, s{s2_}, {TS + kern * 512 * 256 + slot * 8}")
    if phi_sreg is not None:
        a(f"s_lshl_b32 s{s3}, s{phi_sreg}, 7")
        a(f"s_add_u32 s{s2_}, s{s2_}, s{s3}")
    a("s_waitcnt lgkmcnt(0)")
    a(f"v_mov_b32 v{v0}, s{s0}")
    a(f"v_mov_b32 v{v1}, s{s1}")
    a(f"v_mov_b32 v{v2}, s{s2_}")
    a(f"s_mov_b64 s[{s0}:{s1}], exec")
    a("s_mov_b64 exec, 1")
    a(f"buffer_store_dwordx2 v[{v0}:{v1}], v{v2}, s[{srd}:{srd+3}], 0 offen")
    a(f"s_mov_b64 exec, s[{s0}:{s1}]")
    a.label(lab)
```

```python
from asmlib import Asm
from layout import *
from asmlib import stamp
import os
DBG = os.environ.get('STAMPS','0')=='1'
WSZ = WS_USED_DBG if DBG else WS_USED

N_KV, N_ST, N_INIT = 224, 64, 48
NWG0 = N_KV + N_ST + N_INIT + 1

def srd(a, d, base_lo, nbytes):
    a(f"s_mov_b32 s{d}, s{base_lo}")
    a(f"s_and_b32 s{d+1}, s{base_lo+1}, 0xffff")
    a(f"s_mov_b32 s{d+2}, {nbytes:#x}")
    a(f"s_mov_b32 s{d+3}, 0x20000")

def gen_k0(a: Asm):
    a.label("prep_kernel")
    a(f"s_cmp_ge_u32 s2, {NWG0}")
    a("s_cbranch_scc1 K0_done")
    a("s_load_dwordx4 s[4:7], s[0:1], 0")
    a("s_load_dwordx4 s[8:11], s[0:1], 16")
    a("s_load_dwordx2 s[12:13], s[0:1], 96")
    a("s_waitcnt lgkmcnt(0)")
    srd(a, 16, 4, XBYTES)
    srd(a, 20, 6, XBYTES)
    srd(a, 24, 8, XBYTES)
    srd(a, 28, 10, 448 * 8)
    srd(a, 32, 12, WSZ)
    if DBG: stamp(a, 0, 0, 32, tmp_s=(56,57,58,59), tmp_v=(100,101,102))
    a(f"s_cmp_ge_u32 s2, {N_KV + N_ST}")
    a("s_cbranch_scc1 K0_init")
    a(f"s_cmp_ge_u32 s2, {N_KV}")
    a("s_cbranch_scc1 K0_stats")
    a("s_mul_hi_u32 s40, s2, 0x24924925")
    a("s_mul_i32 s41, s40, 7")
    a("s_sub_u32 s41, s2, s41")
    a("s_mul_i32 s42, s40, 57344")
    a("s_lshl_b32 s43, s41, 7")
    a("s_add_u32 s42, s42, s43")
    a("s_sub_u32 s42, s42, 3584")
    a("v_and_b32 v1, 7, v0")
    a("v_lshrrev_b32 v2, 3, v0")
    a("v_mul_u32_u24 v3, 1792, v2")
    a("v_lshl_add_u32 v3, v1, 4, v3")
    a("v_add_u32 v3, s42, v3")
    for j in range(1, 6):
        a(f"v_add_u32 v{3+j}, {896*j}, v3")
    for j in range(6):
        a(f"buffer_load_dwordx4 v[{12+4*j}:{15+4*j}], v{3+j}, s[20:23], 0 offen")
    for j in range(3):
        a(f"buffer_load_dwordx4 v[{36+4*j}:{39+4*j}], v{6+j}, s[24:27], 0 offen")
    a("s_lshl_b32 s43, s41, 9")
    a("v_lshl_add_u32 v9, v1, 6, s43")
    for j in range(4):
        a(f"buffer_load_dwordx4 v[{48+4*j}:{51+4*j}], v9, s[28:31], 0 offen offset:{16*j}")
    a("v_sub_u32 v10, 31, v2")
    a("v_lshlrev_b32 v11, 2, v1")
    a("v_xor_b32 v10, v10, v11")
    a("v_lshlrev_b32 v10, 2, v10")
    a("v_lshl_add_u32 v10, v1, 10, v10")
    a("s_waitcnt vmcnt(0)")
    K, V, W, U = 64, 76, 82, 90
    MASK = "s44"
    a(f"s_mov_b32 {MASK}, 0xffff0000")
    for d in range(4):
        for j in range(6):
            a(f"v_lshlrev_b32 v{K+2*j}, 16, v{12+4*j+d}")
            a(f"v_and_b32 v{K+2*j+1}, {MASK}, v{12+4*j+d}")
        for j in range(3):
            a(f"v_lshlrev_b32 v{V+2*j}, 16, v{36+4*j+d}")
            a(f"v_and_b32 v{V+2*j+1}, {MASK}, v{36+4*j+d}")
        for x in range(2):
            for hw in range(2):
                src = 48 + 4 * d + 2 * x + hw
                a(f"v_lshlrev_b32 v{W+4*x+2*hw}, 16, v{src}")
                a(f"v_and_b32 v{W+4*x+2*hw+1}, {MASK}, v{src}")
        for e in range(3):
            for x in range(2):
                u = U + 2 * e + x
                a(f"v_mul_f32 v{u}, v{K+2*(e)+x}, v{W+4*x+3}")
                a(f"v_fmac_f32 v{u}, v{K+2*(e+1)+x}, v{W+4*x+2}")
                a(f"v_fmac_f32 v{u}, v{K+2*(e+2)+x}, v{W+4*x+1}")
                a(f"v_fmac_f32 v{u}, v{K+2*(e+3)+x}, v{W+4*x+0}")
                a(f"v_mul_f32 v{u}, v{u}, v{V+2*e+x}")
        for x in range(2):
            a(f"v_cvt_pk_bf16_f32 v{96+2*x}, v{U+2+x}, v{U+0+x}")
            a(f"v_cvt_pk_bf16_f32 v{97+2*x}, v{U+4+x}, v{U+2+x}")
            a(f"ds_write_b32 v10, v{96+2*x} offset:{(2*d+x)*128}")
            a(f"ds_write_b32 v10, v{97+2*x} offset:{8192+(2*d+x)*128}")
    a("s_waitcnt lgkmcnt(0)")
    a("s_barrier")
    a("v_lshrrev_b32 v4, 3, v2")
    a("v_xor_b32 v4, v4, v1")
    a("v_lshlrev_b32 v5, 4, v4")
    a("v_lshl_add_u32 v5, v2, 7, v5")
    a("v_xor_b32 v6, 64, v5")
    a("v_add_u32 v6, 4096, v6")
    a("ds_read_b128 v[12:15], v5")
    a("ds_read_b128 v[16:19], v6")
    a("ds_read_b128 v[20:23], v5 offset:8192")
    a("ds_read_b128 v[24:27], v6 offset:8192")
    a("s_lshl_b32 s45, s41, 18")
    a("s_lshl_b32 s46, s40, 7")
    a("s_sub_u32 s45, s45, s46")
    a("s_add_u32 s45, s45, 3968")
    a("v_lshlrev_b32 v7, 12, v2")
    a("v_lshl_add_u32 v7, v1, 4, v7")
    a("v_add_u32 v7, s45, v7")
    a(f"v_add_u32 v8, {32*4096}, v7")
    a(f"s_mov_b32 s47, {UR1}")
    a("s_waitcnt lgkmcnt(3)")
    a("buffer_store_dwordx4 v[12:15], v7, s[32:35], 0 offen")
    a("s_waitcnt lgkmcnt(2)")
    a("buffer_store_dwordx4 v[16:19], v8, s[32:35], 0 offen")
    a("s_waitcnt lgkmcnt(1)")
    a("buffer_store_dwordx4 v[20:23], v7, s[32:35], s47 offen")
    a("s_waitcnt lgkmcnt(0)")
    a("buffer_store_dwordx4 v[24:27], v8, s[32:35], s47 offen")
    if DBG:
        a("s_waitcnt vmcnt(0)")
        stamp(a, 0, 1, 32, tmp_s=(56,57,58,59), tmp_v=(100,101,102))
    a("s_endpgm")
    a.label("K0_stats")
    a(f"s_sub_u32 s40, s2, {N_KV}")
    a("s_lshl_b32 s40, s40, 5")
    a("v_lshrrev_b32 v1, 3, v0")
    a("v_add_u32 v1, s40, v1")
    a("v_and_b32 v2, 7, v0")
    a("v_mul_u32_u24 v3, 896, v1")
    a("v_lshl_add_u32 v3, v2, 4, v3")
    for c in range(7):
        a(f"buffer_load_dwordx4 v[{8+4*c}:{11+4*c}], v3, s[16:19], 0 offen offset:{128*c}")
    a("s_mov_b32 s44, 0xffff0000")
    a("s_waitcnt vmcnt(0)")
    X = 40
    for j in range(28):
        a(f"v_lshlrev_b32 v{X+2*j}, 16, v{8+j}")
        a(f"v_and_b32 v{X+2*j+1}, s44, v{8+j}")
    a(f"v_add_f32 v4, v{X}, v{X+1}")
    a(f"v_add_f32 v5, v{X+2}, v{X+3}")
    for j in range(4, 56, 2):
        a(f"v_add_f32 v4, v4, v{X+j}")
        a(f"v_add_f32 v5, v5, v{X+j+1}")
    a("v_add_f32 v4, v4, v5")
    def red8(r):
        a(f"v_add_f32_dpp v{r}, v{r}, v{r} quad_perm:[1,0,3,2] row_mask:0xf bank_mask:0xf")
        a(f"v_add_f32_dpp v{r}, v{r}, v{r} quad_perm:[2,3,0,1] row_mask:0xf bank_mask:0xf")
        a(f"v_add_f32_dpp v{r}, v{r}, v{r} row_half_mirror row_mask:0xf bank_mask:0xf")
    red8(4)
    a("v_mul_f32 v4, 0x3b124925, v4")
    a("v_mov_b32 v5, 0")
    a("v_mov_b32 v6, 0")
    for j in range(0, 56, 2):
        a(f"v_sub_f32 v{X+j}, v{X+j}, v4")
        a(f"v_sub_f32 v{X+j+1}, v{X+j+1}, v4")
        a(f"v_fmac_f32 v5, v{X+j}, v{X+j}")
        a(f"v_fmac_f32 v6, v{X+j+1}, v{X+j+1}")
    a("v_add_f32 v5, v5, v6")
    red8(5)
    a("v_mov_b32 v6, 0x3727c5ac")
    a("v_fmac_f32 v6, 0x3b124925, v5")
    a("v_rsq_f32 v5, v6")
    a("v_cmp_eq_u32 vcc, 0, v2")
    a("v_lshlrev_b32 v7, 3, v1")
    a(f"v_add_u32 v7, {ST0}, v7")
    a("s_and_saveexec_b64 s[46:47], vcc")
    a("s_cbranch_execz K0_done")
    a("buffer_store_dwordx2 v[4:5], v7, s[32:35], 0 offen")
    a("s_endpgm")
    a.label("K0_init")
    a(f"s_sub_u32 s40, s2, {N_KV + N_ST}")
    a(f"s_cmp_ge_u32 s40, {N_INIT}")
    a("s_cbranch_scc1 K0_tick")
    a("s_lshl_b32 s40, s40, 14")
    a(f"s_add_u32 s40, s40, {SYNC}")
    a("v_lshl_add_u32 v1, v0, 4, s40")
    for j in range(4):
        a(f"v_mov_b32 v{4+j}, -1")
    for j in range(4):
        a(f"s_mov_b32 s41, {4096*j}")
        a("buffer_store_dwordx4 v[4:7], v1, s[32:35], s41 offen")
    a("s_endpgm")
    a.label("K0_tick")
    a(f"s_mov_b32 s40, {TICK}")
    a("v_lshl_add_u32 v1, v0, 4, s40")
    for j in range(4):
        a(f"v_mov_b32 v{4+j}, 0")
    a("buffer_store_dwordx4 v[4:7], v1, s[32:35], 0 offen")
    a.label("K0_done")
    a("s_endpgm")

K0_DESC = """
.amdhsa_kernel prep_kernel
  .amdhsa_next_free_vgpr 104
  .amdhsa_next_free_sgpr 64
  .amdhsa_accum_offset 104
  .amdhsa_group_segment_fixed_size 0
  .amdhsa_kernarg_size 104
  .amdhsa_user_sgpr_count 2
  .amdhsa_user_sgpr_kernarg_segment_ptr 1
  .amdhsa_system_sgpr_workgroup_id_x 1
  .amdhsa_float_denorm_mode_32 3
  .amdhsa_float_denorm_mode_16_64 3
.end_amdhsa_kernel
"""
```

```python
from asmlib import Asm
from layout import *
from k0 import srd, DBG, WSZ
from asmlib import stamp

NWG = 256
LDS_BYTES = 163840
XRING = 0
SLOT = 28672
AUX = 114688
CU = [[AUX + 0, AUX + 4288], [AUX + 8576, AUX + 12864]]
CH = [AUX + 17152, AUX + 21760]
CRED = AUX + 26368

S_WS, S_H, S_Q, S_WG, S_WU, S_WD, S_OUT = 8, 12, 16, 20, 24, 28, 32
S_ID = 2
S_W = 36
S_T0, S_T1, S_T2, S_T3, S_T4, S_T5 = 40, 41, 42, 43, 44, 45

def st(a, slot, wave=0, late=False, phi=False):
    if DBG: stamp(a, 1, slot, S_WS, wave_sreg=S_W, onlywave=wave, tmp_v=((10,11,12) if late else (250,251,252)), phi_sreg=(70 if phi else None))

def prologue(a):
    a.label("main_kernel")
    a(f"s_cmp_ge_u32 s2, {NWG}")
    a("s_cbranch_scc1 KB_done")
    a("s_load_dwordx2 s[4:5], s[0:1], 96")
    a("s_load_dwordx4 s[48:51], s[0:1], 32")
    a("s_load_dwordx2 s[6:7], s[0:1], 0")
    a("s_load_dwordx4 s[52:55], s[0:1], 56")
    a("s_load_dwordx4 s[56:59], s[0:1], 72")
    a("v_lshrrev_b32 v1, 6, v0")
    a("v_and_b32 v0, 63, v0")
    a(f"v_readfirstlane_b32 s{S_W}, v1")
    a("s_waitcnt lgkmcnt(0)")
    srd(a, S_WS, 4, WSZ)
    srd(a, S_H, 48, XBYTES)
    srd(a, S_Q, 6, XBYTES)
    srd(a, S_WG, 52, WBYTES)
    srd(a, S_WU, 54, WBYTES)
    srd(a, S_WD, 56, WBYTES)
    srd(a, S_OUT, 58, XBYTES)
    st(a, 0)

def conv_issue(a):
    a(f"s_lshr_b32 s46, s{S_W}, 1")
    a(f"s_and_b32 s47, s{S_W}, 1")
    a("s_lshl_b32 s40, s2, 1")
    a("s_add_u32 s40, s40, s46")
    a("s_lshl_b32 s40, s40, 12")
    a(f"s_mul_i32 s41, s47, {UR1 - UR0}")
    a("s_add_u32 s41, s41, s40")
    a(f"s_mul_i32 s42, s{S_W}, 4288")
    a(f"s_add_u32 s42, s42, {AUX}")
    a("v_lshlrev_b32 v2, 4, v0")
    a("s_mov_b32 m0, s42")
    for p in range(4):
        a(f"buffer_load_dwordx4 v2, s[{S_WS}:{S_WS+3}], s41 offen offset:{1024*p} lds")
    a("s_lshl_b32 s43, s47, 11")
    a("s_add_u32 s44, s40, s43")
    a(f"s_mul_i32 s45, s46, {CH[1]-CH[0]}")
    a(f"s_add_u32 s45, s45, {CH[0]}")
    a("s_add_u32 s43, s43, s45")
    a("s_add_u32 s43, s43, 512")
    a("s_mov_b32 m0, s43")
    for p in range(2):
        a(f"buffer_load_dwordx4 v2, s[{S_H}:{S_H+3}], s44 offen offset:{1024*p} lds")
    for j in range(4):
        a(f"v_mov_b32 v{4+j}, 0")
    a("s_add_u32 s43, s42, 4096")
    a("v_add_u32 v3, s43, v2")
    a("s_lshl_b32 s43, s47, 8")
    a("s_add_u32 s43, s43, s45")
    a("s_sub_u32 s43, s43, 128")
    a("v_add_u32 v8, s43, v2")
    a("v_cmp_gt_u32 vcc, 8, v0")
    a("v_cndmask_b32 v3, v8, v3, vcc")
    a("v_cmp_gt_u32 vcc, 24, v0")
    a("s_and_saveexec_b64 s[60:61], vcc")
    a("ds_write_b128 v3, v[4:7]")
    a("s_mov_b64 exec, s[60:61]")
    a("s_lshl_b32 s43, s2, 2")
    a("s_load_dword s62, s[50:51], s43")

ACC = 20
FA = [52, 116]
FB = [84, 148]

def conv_main(a, ndma_after):
    a("v_and_b32 v3, 15, v0")
    a("v_lshrrev_b32 v4, 4, v0")
    a("v_lshrrev_b32 v5, 1, v4")
    a("v_and_b32 v4, 1, v4")
    a("v_and_b32 v6, 1, v3")
    a(f"s_mul_i32 s40, s46, {CU[1][0]-CU[0][0]}")
    a(f"s_add_u32 s40, s40, {CU[0][0] + 2*2046 - 192}")
    a("s_lshl_b32 s41, s47, 8")
    a("s_sub_u32 s40, s40, s41")
    a("v_mul_u32_u24 v7, 4290, v6")
    a("v_add_u32 v7, s40, v7")
    a("v_lshlrev_b32 v18, 1, v3")
    a("v_sub_u32 v7, v7, v18")
    a("v_lshlrev_b32 v18, 5, v5")
    a("v_sub_u32 v7, v7, v18")
    a("v_lshl_add_u32 v8, v4, 4, v7")
    for k in range(1, 8):
        a(f"v_subrev_u32 v{8+k}, {512*k}, v8")
    a(f"s_mul_i32 s40, s46, {CH[1]-CH[0]}")
    a(f"s_add_u32 s40, s40, {CH[0] + 512 - 192}")
    a("s_sub_u32 s40, s40, s41")
    a("v_lshlrev_b32 v16, 5, v3")
    a("v_add_u32 v16, s40, v16")
    a("v_sub_u32 v16, v16, v18")
    a("v_lshl_add_u32 v16, v4, 4, v16")
    a(f"s_waitcnt vmcnt({ndma_after}) lgkmcnt(0)")
    a("s_barrier")
    st(a, 1)
    def loads(bp, buf):
        L = []
        for e in range(8):
            L.append(f"ds_read_b128 v[{FB[buf]+4*e}:{FB[buf]+4*e+3}], v16 offset:{512*e + 64*(3-bp)}")
            o = 16 * (3 - bp)
            L.append(f"ds_read2_b32 v[{FA[buf]+4*e}:{FA[buf]+4*e+1}], v{8+e} offset0:{o} offset1:{o+1}")
            L.append(f"ds_read2_b32 v[{FA[buf]+4*e+2}:{FA[buf]+4*e+3}], v{8+e} offset0:{o+2} offset1:{o+3}")
        return L
    for ln in loads(0, 0): a(ln)
    for bp in range(4):
        buf = bp & 1
        a("s_waitcnt lgkmcnt(0)")
        nxt = loads(bp + 1, buf ^ 1) if bp < 3 else []
        k = 0
        for aa in range(8):
            for t in range(aa, 8):
                e = t - aa
                c = f"v[{ACC+4*t}:{ACC+4*t+3}]"
                src = c if not (bp == 0 and aa == 0) else "0"
                a(f"v_mfma_f32_16x16x32_bf16 {c}, v[{FA[buf]+4*aa}:{FA[buf]+4*aa+3}], v[{FB[buf]+4*e}:{FB[buf]+4*e+3}], {src}")
                if k < len(nxt):
                    a(nxt[k])
                k += 1

def conv_epilogue(a):
    a("v_lshlrev_b32 v2, 4, v0")
    a(f"s_lshl_b32 s40, s{S_W}, 12")
    a(f"s_add_u32 s40, s40, {CRED}")
    a("v_add_u32 v3, s40, v2")
    a(f"s_xor_b32 s41, s{S_W}, 1")
    a("s_lshl_b32 s41, s41, 12")
    a(f"s_add_u32 s41, s41, {CRED}")
    a("v_add_u32 v4, s41, v2")
    a("v_and_b32 v5, 15, v0")
    a("v_lshrrev_b32 v6, 4, v0")
    a("v_lshlrev_b32 v7, 5, v5")
    a("v_lshl_add_u32 v7, v6, 3, v7")
    a(f"s_mul_i32 s40, s46, {CU[1][1]-CU[0][1]}")
    a(f"s_add_u32 s40, s40, {CU[0][1] + 4088 - 1536}")
    a("s_lshl_b32 s41, s47, 11")
    a("s_sub_u32 s40, s40, s41")
    a("v_sub_u32 v8, s40, v7")
    a("s_lshl_b32 s40, s2, 1")
    a("s_add_u32 s40, s40, s46")
    a("s_lshl_b32 s40, s40, 12")
    a("s_add_u32 s40, s40, s41")
    a(f"s_add_u32 s40, s40, {YT}")
    a("v_add_u32 v9, s40, v7")
    a("s_waitcnt lgkmcnt(0)")
    a("s_lshl_b32 s40, s62, 16")
    a("s_and_b32 s41, s62, 0xffff0000")
    a("s_cmp_eq_u32 s46, 0")
    a("s_cselect_b32 s62, s40, s41")
    a("s_mov_b32 s63, 0xffff0000")
    for t in range(4):
        a(f"ds_read_b64 v[{56+2*t}:{57+2*t}], v8 offset:{512*(3-t)}")
    lab1, lab2 = a.newlabel("CV"), a.newlabel("CV")
    a("s_cmp_eq_u32 s47, 0")
    a(f"s_cbranch_scc0 {lab1}")
    for kh in range(2):
        keep = ACC + 16 * kh
        send = ACC + 16 * (1 - kh)
        for c in range(4):
            a(f"ds_write_b128 v3, v[{send+4*c}:{send+4*c+3}] offset:{1024*c}")
        a("s_waitcnt lgkmcnt(0)")
        a("s_barrier")
        for c in range(4):
            a(f"ds_read_b128 v[{64+4*c}:{67+4*c}], v4 offset:{1024*c}")
        a("s_waitcnt lgkmcnt(0)")
        for t in range(4):
            a(f"v_and_b32 v80, s63, v{57+2*t}")
            a(f"v_lshlrev_b32 v81, 16, v{57+2*t}")
            a(f"v_and_b32 v82, s63, v{56+2*t}")
            a(f"v_lshlrev_b32 v83, 16, v{56+2*t}")
            for j in range(4):
                a(f"v_add_f32 v{keep+4*t+j}, v{keep+4*t+j}, v{64+4*t+j}")
                a(f"v_fmac_f32 v{keep+4*t+j}, s62, v{80+j}")
            a(f"v_cvt_pk_bf16_f32 v{84+2*t}, v{keep+4*t}, v{keep+4*t+1}")
            a(f"v_cvt_pk_bf16_f32 v{85+2*t}, v{keep+4*t+2}, v{keep+4*t+3}")
            a(f"buffer_store_dwordx2 v[{84+2*t}:{85+2*t}], v9, s[{S_WS}:{S_WS+3}], 0 offen offset:{512*t} sc0 sc1")
        if kh == 0:
            a(f"s_branch {lab2}")
            a.label(lab1)
    a.label(lab2)
    a("s_waitcnt vmcnt(0)")
    a("s_barrier")
    a(f"s_cmp_eq_u32 s{S_W}, 0")
    lab = a.newlabel("CV")
    a(f"s_cbranch_scc0 {lab}")
    a("s_lshl_b32 s40, s2, 7")
    a(f"s_add_u32 s40, s40, {CFL}")
    a("v_mov_b32 v2, s40")
    a("v_mov_b32 v3, 1")
    a("s_mov_b64 s[60:61], exec")
    a("s_mov_b64 exec, 1")
    a(f"buffer_store_dword v3, v2, s[{S_WS}:{S_WS+3}], 0 offen sc0 sc1")
    a("s_mov_b64 exec, s[60:61]")
    a.label(lab)


STAT = AUX
RED = AUX + 4096
S_G, S_J, S_DC, S_SQ = 64, 65, 66, 67
S_SOWN, S_DT = 68, 69
S_PHI = 70
S_XF, S_HF, S_GX, S_HFL = 71, 72, 73, 74
S_TAU = 75
S_SG0 = 76
S_MASK = 77
S_ERR = 78
S_A, S_B, S_C, S_D2, S_E = 80, 81, 82, 83, 84
SPIN_MAX = 20000
V_L16 = 1
V_XB = 2
V_A0, V_A1, V_A2, V_A3 = 3, 4, 5, 6
V_ACC = 16
V_CS = 48
V_RING = 64
V_XRES = 112
V_YRES = 120
V_T = 128
V_OWN = 8
V_OWNR = 160
def WGU(k):
    return f"a[{224+4*k}:{227+4*k}]" if k < 8 else f"v[{176+4*(k-8)}:{179+4*(k-8)}]"
def WGU2(k, rd):
    return f"a[{224+4*k+2*rd}:{225+4*k+2*rd}]" if k < 8 else f"v[{176+4*(k-8)+2*rd}:{177+4*(k-8)+2*rd}]"
def WD(dt, k):
    b = (2 * k + dt) * 4
    return f"a[{b}:{b+3}]"
def WD2(dt, k, rd):
    b = (2 * k + dt) * 4 + 2 * rd
    return f"a[{b}:{b+1}]"
STORE_SC = " sc0 sc1"

def roles(a):
    a(f"s_and_b32 s{S_G}, s2, 7")
    a(f"s_lshr_b32 s{S_J}, s2, 3")
    a(f"s_mul_hi_u32 s{S_SQ}, s{S_J}, 0x24924925")
    a(f"s_mul_i32 s{S_A}, s{S_SQ}, 7")
    a(f"s_sub_u32 s{S_DC}, s{S_J}, s{S_A}")
    a(f"s_lshl_b32 s{S_SG0}, s{S_G}, 3")
    a(f"s_lshr_b32 s{S_A}, s{S_W}, 1")
    a(f"s_lshl_b32 s{S_A}, s{S_A}, 2")
    a(f"s_add_u32 s{S_SOWN}, s{S_SQ}, s{S_A}")
    a(f"s_add_u32 s{S_SOWN}, s{S_SOWN}, s{S_SG0}")
    a(f"s_and_b32 s{S_A}, s{S_W}, 1")
    a(f"s_lshl_b32 s{S_DT}, s{S_DC}, 1")
    a(f"s_add_u32 s{S_DT}, s{S_DT}, s{S_A}")
    a(f"s_lshl_b32 s{S_TAU}, s{S_J}, 2")
    a(f"s_add_u32 s{S_TAU}, s{S_TAU}, s{S_W}")
    a(f"s_mov_b32 s{S_MASK}, 0xffff0000")
    a(f"s_mov_b32 s{S_ERR}, 0")
    a(f"v_lshlrev_b32 v{V_L16}, 4, v0")

def wsrc_lane(a, vdst, rowbytes, mu_sreg=None):
    a(f"v_lshrrev_b32 v{V_T}, 4, v0")
    a(f"v_and_b32 v{V_T}, 1, v{V_T}")
    a(f"v_lshrrev_b32 v{V_T+1}, 2, v0")
    a(f"v_and_b32 v{V_T+1}, 3, v{V_T+1}")
    a(f"v_lshl_add_u32 v{V_T}, v{V_T}, 2, v{V_T+1}")
    a(f"s_mov_b32 s{S_A}, {rowbytes}")
    a(f"v_mul_lo_u32 v{V_T}, s{S_A}, v{V_T}")
    a(f"v_and_b32 v{V_T+1}, 3, v0")
    if mu_sreg is not None:
        a(f"s_lshl_b32 s{S_A}, s{mu_sreg}, 1")
        a(f"v_xor_b32 v{V_T+1}, s{S_A}, v{V_T+1}")
    a(f"v_lshrrev_b32 v{V_T+2}, 5, v0")
    a(f"v_lshl_add_u32 v{V_T+1}, v{V_T+2}, 2, v{V_T+1}")
    a(f"v_lshl_add_u32 v{vdst}, v{V_T+1}, 4, v{V_T}")

def wgu_issue(a):
    a(f"s_lshr_b32 s{S_B}, s{S_W}, 1")
    wsrc_lane(a, V_A0, 3584, mu_sreg=S_B)
    a(f"s_and_b32 s{S_C}, s{S_W}, 1")
    a(f"s_mul_i32 s{S_D2}, s{S_C}, {28*28672}")
    a(f"s_lshl_b32 s{S_E}, s{S_J}, 7")
    a(f"s_add_u32 s{S_D2}, s{S_D2}, s{S_E}")
    a(f"s_mul_i32 s{S_A}, s{S_B}, 57344")
    a(f"s_mul_i32 s{S_C}, s{S_C}, {28*1024}")
    a(f"s_add_u32 s{S_A}, s{S_A}, s{S_C}")
    lab_u, lab_e = a.newlabel("WG"), a.newlabel("WG")
    a(f"s_cmp_eq_u32 s{S_B}, 0")
    a(f"s_cbranch_scc0 {lab_u}")
    for mu, S_SRC in ((0, S_WG), (1, S_WU)):
        for n in range(28):
            if n % 4 == 0:
                a(f"s_add_u32 m0, s{S_A}, {XRING + n*1024}")
            a(f"s_add_u32 s{S_E}, s{S_D2}, {n*28672 - (n%4)*1024}")
            a(f"buffer_load_dwordx4 v{V_A0}, s[{S_SRC}:{S_SRC+3}], s{S_E} offen offset:{(n%4)*1024} lds")
        if mu == 0:
            a(f"s_branch {lab_e}")
            a.label(lab_u)
    a.label(lab_e)

def tr_lane_common(a):
    a(f"v_lshrrev_b32 v{V_T}, 5, v0")
    a(f"v_lshrrev_b32 v{V_T+1}, 4, v0")
    a(f"v_and_b32 v{V_T+1}, 1, v{V_T+1}")
    a(f"v_lshrrev_b32 v{V_T+2}, 2, v0")
    a(f"v_and_b32 v{V_T+2}, 3, v{V_T+2}")
    a(f"v_and_b32 v{V_T+3}, 3, v0")

def wgu_read(a):
    tr_lane_common(a)
    a(f"v_lshrrev_b32 v{V_T+4}, 1, v{V_T+3}")
    a(f"s_and_b32 s{S_A}, s{S_W}, 1")
    a(f"s_lshl_b32 s{S_A}, s{S_A}, 1")
    a(f"v_add_u32 v{V_T+4}, s{S_A}, v{V_T+4}")
    a(f"v_lshlrev_b32 v{V_T+5}, 1, v{V_T+1}")
    a(f"v_xor_b32 v{V_T+4}, v{V_T+4}, v{V_T+5}")
    a(f"v_lshl_add_u32 v{V_T+4}, v{V_T+2}, 2, v{V_T+4}")
    a(f"s_lshr_b32 s{S_A}, s{S_W}, 1")
    a(f"s_lshl_b32 s{S_A}, s{S_A}, 1")
    a(f"v_add_u32 v{V_T+5}, s{S_A}, v{V_T}")
    a(f"v_lshl_add_u32 v{V_T+4}, v{V_T+5}, 4, v{V_T+4}")
    a(f"v_lshlrev_b32 v{V_T+4}, 4, v{V_T+4}")
    a(f"v_and_b32 v{V_T+5}, 1, v{V_T+3}")
    a(f"v_lshl_add_u32 v{V_T+4}, v{V_T+5}, 3, v{V_T+4}")
    a(f"v_mul_u32_u24 v{V_T+5}, 57344, v{V_T+1}")
    a(f"v_add_u32 v{V_A0}, v{V_T+4}, v{V_T+5}")
    if XRING: a(f"v_add_u32 v{V_A0}, {XRING}, v{V_A0}")
    for k in range(28):
        for rd in range(2):
            a(f"ds_read_b64_tr_b16 {WGU2(k, rd)}, v{V_A0} offset:{(2*k+rd)*1024}")
        if k % 7 == 6:
            a("s_waitcnt lgkmcnt(0)")
    for j in range(4):
        a(f"v_mov_b32 v{V_T+8+j}, 0x3f803f80")
    for k in range(28):
        src = "0" if k == 0 else f"v[{V_CS}:{V_CS+15}]"
        a(f"v_mfma_f32_32x32x16_bf16 v[{V_CS}:{V_CS+15}], {WGU(k)}, v[{V_T+8}:{V_T+11}], {src}")

def wd_issue(a, rr):
    wsrc_lane(a, V_A1, 896)
    a(f"s_mul_i32 s{S_D2}, s{S_W}, {448*896}")
    a(f"s_lshl_b32 s{S_E}, s{S_DC}, 7")
    a(f"s_add_u32 s{S_D2}, s{S_D2}, s{S_E}")
    a(f"s_mul_i32 s{S_A}, s{S_W}, {SLOT}")
    for n in range(28):
        if n % 4 == 0:
            a(f"s_add_u32 m0, s{S_A}, {XRING + n*1024}")
        a(f"s_add_u32 s{S_E}, s{S_D2}, {(224*rr + 8*n)*896 - (n%4)*1024}")
        a(f"buffer_load_dwordx4 v{V_A1}, s[{S_WD}:{S_WD+3}], s{S_E} offen offset:{(n%4)*1024} lds")

def wd_read(a, rr):
    tr_lane_common(a)
    a(f"v_lshlrev_b32 v{V_T+4}, 8, v{V_T}")
    a(f"v_lshl_add_u32 v{V_T+4}, v{V_T+2}, 6, v{V_T+4}")
    a(f"v_lshl_add_u32 v{V_T+4}, v{V_T+1}, 5, v{V_T+4}")
    a(f"v_lshl_add_u32 v{V_T+4}, v{V_T+3}, 3, v{V_T+4}")
    a(f"s_mul_i32 s{S_A}, s{S_W}, {SLOT}")
    a(f"s_add_u32 s{S_A}, s{S_A}, {XRING}")
    a(f"v_add_u32 v{V_A1}, s{S_A}, v{V_T+4}")
    n = 0
    for kk in range(14):
        for dt in range(2):
            for rd in range(2):
                a(f"ds_read_b64_tr_b16 {WD2(dt, 14*rr+kk, rd)}, v{V_A1} offset:{(2*kk+rd)*1024 + 512*dt}")
                n += 1
                if n % 12 == 0: a("s_waitcnt lgkmcnt(0)")
    a("s_waitcnt lgkmcnt(0)")

def spin_guard(a, cnt_sreg, loop_lab, done_lab, code):
    a(f"s_add_u32 s{cnt_sreg}, s{cnt_sreg}, 1")
    a(f"s_cmp_lt_u32 s{cnt_sreg}, {SPIN_MAX}")
    a(f"s_cbranch_scc0 {done_lab}_to")
    a("s_sleep 1")
    a(f"s_branch {loop_lab}")
    a.label(f"{done_lab}_to")
    a(f"s_or_b32 s{S_ERR}, s{S_ERR}, {code}")

def poll_flags(a, vaddr, nlanes, code, ready_ne=True):
    L, Dn = a.newlabel("PF"), a.newlabel("PFD")
    a(f"s_mov_b32 s{S_A}, 0")
    a(f"s_mov_b64 s[86:87], exec")
    a(f"s_mov_b64 exec, {hex((1 << nlanes) - 1)}")
    a.label(L)
    a(f"buffer_load_dword v{V_T}, v{vaddr}, s[{S_WS}:{S_WS+3}], 0 offen sc1")
    a("s_waitcnt vmcnt(0)")
    a(f"v_cmp_eq_u32 vcc, -1, v{V_T}")
    a(f"s_cbranch_vccz {Dn}")
    spin_guard(a, S_A, L, Dn, code)
    a.label(Dn)
    a(f"s_mov_b64 exec, s[86:87]")

def gather_stats(a, off_sreg, code, vS, vQ):
    G = V_T
    a(f"v_and_b32 v{V_A3}, 31, v0")
    a(f"v_lshlrev_b32 v{V_A3}, 3, v{V_A3}")
    a(f"v_lshrrev_b32 v{G}, 5, v0")
    a(f"v_lshl_add_u32 v{V_A3}, v{G}, 8, v{V_A3}")
    a(f"v_add_u32 v{V_A3}, s{off_sreg}, v{V_A3}")
    L, Dn = a.newlabel("GS"), a.newlabel("GSD")
    a(f"s_mov_b32 s{S_A}, 0")
    a.label(L)
    for i in range(7):
        a(f"buffer_load_dwordx2 v[{G+2*i}:{G+2*i+1}], v{V_A3}, s[{S_WS}:{S_WS+3}], 0 offen offset:{512*i} sc1")
    a("s_waitcnt vmcnt(0)")
    a(f"v_cmp_eq_u32 vcc, -1, v{G}")
    for i in range(1, 14):
        a(f"v_cmp_eq_u32 s[88:89], -1, v{G+i}")
        a(f"s_or_b64 vcc, vcc, s[88:89]")
    a(f"s_cbranch_vccz {Dn}")
    spin_guard(a, S_A, L, Dn, code)
    a.label(Dn)
    a(f"v_add_f32 v{vS}, v{G}, v{G+2}")
    a(f"v_add_f32 v{vQ}, v{G+1}, v{G+3}")
    for i in range(2, 7):
        a(f"v_add_f32 v{vS}, v{vS}, v{G+2*i}")
        a(f"v_add_f32 v{vQ}, v{vQ}, v{G+2*i+1}")
    a(f"v_mov_b32 v{G}, v{vS}")
    a(f"v_mov_b32 v{G+1}, v{vQ}")
    a(f"v_permlane32_swap_b32 v{G}, v{vS}")
    a(f"v_permlane32_swap_b32 v{G+1}, v{vQ}")
    a(f"v_add_f32 v{vS}, v{vS}, v{G}")
    a(f"v_add_f32 v{vQ}, v{vQ}, v{G+1}")

def stats_finish(a, vS, vQ, vM, vR, t):
    a(f"v_mul_f32 v{vM}, 0x3b124925, v{vS}")
    a(f"v_mul_f32 v{t}, 0x3b124925, v{vQ}")
    a(f"v_fma_f32 v{t}, -v{vM}, v{vM}, v{t}")
    a(f"v_max_f32 v{t}, 0, v{t}")
    a(f"v_add_f32 v{t}, 0x3727c5ac, v{t}")
    a(f"v_rsq_f32 v{vR}, v{t}")

def publish_x(a, X, code):
    for i in range(8):
        a(f"v_cvt_pk_bf16_f32 v{V_XRES+i}, v{X+2*i}, v{X+2*i+1}")
    a(f"s_mul_i32 s{S_A}, s{S_SOWN}, 28")
    a(f"s_lshl_b32 s{S_B}, s{S_DT}, 1")
    a(f"s_add_u32 s{S_A}, s{S_A}, s{S_B}")
    a(f"s_lshl_b32 s{S_A}, s{S_A}, 10")
    a(f"s_add_u32 s{S_A}, s{S_A}, s{S_XF}")
    a(f"buffer_store_dwordx4 v[{V_XRES}:{V_XRES+3}], v{V_L16}, s[{S_WS}:{S_WS+3}], s{S_A} offen{STORE_SC}")
    a(f"buffer_store_dwordx4 v[{V_XRES+4}:{V_XRES+7}], v{V_L16}, s[{S_WS}:{S_WS+3}], s{S_A} offen offset:1024{STORE_SC}")
    partial_stats(a, X)
    a("s_waitcnt vmcnt(0)")
    store_granule(a, X, S_GX)

def partial_stats(a, X):
    a(f"v_mov_b32 v{X}, 0")
    a(f"v_mov_b32 v{X+1}, 0")
    for i in range(8):
        a(f"v_lshlrev_b32 v{X+2}, 16, v{V_XRES+i}")
        a(f"v_and_b32 v{X+3}, s{S_MASK}, v{V_XRES+i}")
        a(f"v_add_f32 v{X}, v{X}, v{X+2}")
        a(f"v_fmac_f32 v{X+1}, v{X+2}, v{X+2}")
        a(f"v_add_f32 v{X}, v{X}, v{X+3}")
        a(f"v_fmac_f32 v{X+1}, v{X+3}, v{X+3}")
    a(f"v_mov_b32 v{X+2}, v{X}")
    a(f"v_mov_b32 v{X+3}, v{X+1}")
    a(f"v_permlane32_swap_b32 v{X+2}, v{X}")
    a(f"v_permlane32_swap_b32 v{X+3}, v{X+1}")
    a(f"v_add_f32 v{X}, v{X}, v{X+2}")
    a(f"v_add_f32 v{X+1}, v{X+1}, v{X+3}")

def store_granule(a, X, base_sreg):
    a(f"s_mul_i32 s{S_A}, s{S_SOWN}, 14")
    a(f"s_add_u32 s{S_A}, s{S_A}, s{S_DT}")
    a(f"s_lshl_b32 s{S_A}, s{S_A}, 8")
    a(f"s_add_u32 s{S_A}, s{S_A}, s{base_sreg}")
    a(f"v_lshlrev_b32 v{V_A3}, 3, v0")
    a(f"s_mov_b64 s[86:87], exec")
    a(f"s_mov_b32 exec_hi, 0")
    a(f"buffer_store_dwordx2 v[{X}:{X+1}], v{V_A3}, s[{S_WS}:{S_WS+3}], s{S_A} offen{STORE_SC}")
    a(f"s_mov_b64 exec, s[86:87]")

def gate_step(a, X, vM, vR):
    t = V_T + 20
    for i in range(8):
        a(f"v_lshlrev_b32 v{t}, 16, v{V_YRES+i}")
        a(f"v_and_b32 v{t+1}, s{S_MASK}, v{V_YRES+i}")
        a(f"v_sub_f32 v{t+2}, v{X+2*i}, v{vM}")
        a(f"v_sub_f32 v{t+3}, v{X+2*i+1}, v{vM}")
        a(f"v_mul_f32 v{t}, v{t}, v{vR}")
        a(f"v_mul_f32 v{t+1}, v{t+1}, v{vR}")
        a(f"v_fmac_f32 v{X+2*i}, v{t}, v{t+2}")
        a(f"v_fmac_f32 v{X+2*i+1}, v{t+1}, v{t+3}")

def x0_loads(a):
    Q = V_T + 24
    a(f"v_and_b32 v{V_T}, 31, v0")
    a(f"s_lshl_b32 s{S_A}, s{S_SOWN}, 5")
    a(f"v_add_u32 v{V_T}, s{S_A}, v{V_T}")
    a(f"v_mul_u32_u24 v{V_A0}, 896, v{V_T}")
    a(f"v_lshrrev_b32 v{V_T+1}, 5, v0")
    a(f"v_lshl_add_u32 v{V_A0}, v{V_T+1}, 3, v{V_A0}")
    a(f"s_lshl_b32 s{S_A}, s{S_DT}, 6")
    for k in range(4):
        a(f"buffer_load_dwordx2 v[{Q+2*k}:{Q+2*k+1}], v{V_A0}, s[{S_Q}:{S_Q+3}], s{S_A} offen offset:{16*k}")
    a(f"v_lshlrev_b32 v{V_A1}, 3, v{V_T}")
    a(f"s_mov_b32 s{S_A}, {ST0}")
    a(f"buffer_load_dwordx2 v[{V_T+16}:{V_T+17}], v{V_A1}, s[{S_WS}:{S_WS+3}], s{S_A} offen")
    a(f"v_lshlrev_b32 v{V_A2}, 1, v{V_T}")
    a(f"v_lshl_add_u32 v{V_A2}, v{V_T+1}, 14, v{V_A2}")
    a(f"s_lshl_b32 s{S_A}, s{S_DT}, 11")
    a(f"s_add_u32 s{S_A}, s{S_A}, {CFL}")
    a(f"v_lshlrev_b32 v{V_A1}, 7, v0")
    a(f"v_add_u32 v{V_A1}, s{S_A}, v{V_A1}")

def x0_y(a):
    poll_flags(a, V_A1, 16, 1)
    Yr = V_OWNR
    for i in range(16):
        a(f"v_mov_b32 v{Yr+i}, 0")
    a(f"s_lshl_b32 s{S_B}, s{S_DT}, 17")
    a(f"s_add_u32 s{S_B}, s{S_B}, {YT}")
    for q in range(16):
        d = 8 * (q >> 2) + (q & 3)
        a(f"s_add_u32 s{S_A}, s{S_B}, {d*4096}")
        a(f"buffer_load_short_d16_hi v{Yr+q}, v{V_A2}, s[{S_WS}:{S_WS+3}], s{S_A} offen")
    a("s_waitcnt vmcnt(0)")
    for i in range(8):
        a(f"v_cvt_pk_bf16_f32 v{V_YRES+i}, v{Yr+2*i}, v{Yr+2*i+1}")

def x0_compute(a):
    Q = V_T + 24
    X = V_OWNR
    for i in range(8):
        a(f"v_lshlrev_b32 v{X+2*i}, 16, v{Q+i}")
        a(f"v_and_b32 v{X+2*i+1}, s{S_MASK}, v{Q+i}")
    gate_step(a, X, V_T + 16, V_T + 17)
    publish_x(a, X, 2)

def set_phi(a, phi):
    a(f"s_mov_b32 s{S_PHI}, {phi}")
    a(f"s_mov_b32 s{S_XF}, {XF1 if phi else XF0}")
    a(f"s_mov_b32 s{S_HF}, {HF1 if phi else HF0}")
    a(f"s_mov_b32 s{S_GX}, {GX1 if phi else GX0}")
    a(f"s_mov_b32 s{S_HFL}, {HFL + (64*112*4 if phi else 0)}")

def p2_prefetch(a, sig):
    a(f"s_add_u32 s{S_C}, s{S_SG0}, {sig}")
    a(f"s_mul_i32 s{S_D2}, s{S_C}, {14*256}")
    a(f"s_add_u32 s{S_D2}, s{S_D2}, s{S_GX}")
    vS, vQ = V_T + 16, V_T + 17
    gather_stats(a, S_D2, 4, vS, vQ)
    lab = a.newlabel("PP")
    a(f"s_cmp_eq_u32 s{S_W}, {sig & 3}")
    a(f"s_cbranch_scc0 {lab}")
    vM, vR = V_T + 20, V_T + 19
    stats_finish(a, vS, vQ, vM, vR, V_T + 18)
    a(f"v_mul_f32 v{V_T+21}, 0xbfb8aa3b, v{vR}")
    a(f"v_mul_f32 v{V_T+22}, v{vR}, v{vR}")
    a(f"v_mov_b32 v{V_T+23}, 0")
    a(f"ds_write_b128 v{V_A2}, v[{V_T+20}:{V_T+23}] offset:{512*sig}")
    a.label(lab)
    a(f"s_mul_i32 s{S_D2}, s{S_C}, 28672")
    a(f"s_add_u32 s{S_D2}, s{S_D2}, s{S_XF}")
    a(f"s_mul_i32 s{S_E}, s{S_W}, 7168")
    a(f"s_add_u32 s{S_D2}, s{S_D2}, s{S_E}")
    a(f"s_add_u32 m0, s{S_E}, {XRING + (sig & 3)*SLOT}")
    a("s_nop 0")
    for n in range(4):
        a(f"buffer_load_dwordx4 v{V_L16}, s[{S_WS}:{S_WS+3}], s{S_D2} offen offset:{n*1024} lds")
    a(f"s_add_u32 s{S_D2}, s{S_D2}, 4096")
    a(f"s_add_u32 m0, s{S_E}, {XRING + (sig & 3)*SLOT + 4096}")
    a("s_nop 0")
    for n in range(3):
        a(f"buffer_load_dwordx4 v{V_L16}, s[{S_WS}:{S_WS+3}], s{S_D2} offen offset:{n*1024} lds")

def epi_list(sig):
    A = V_ACC + 16 * (sig & 1)
    T = V_T
    vM, vA_ = T + 24, T + 25
    L = []
    L.append(f"ds_read_b64 v[{vM}:{vA_}], v{V_A2} offset:{512*sig}")
    L.append("s_waitcnt lgkmcnt(0)")
    for q in range(8):
        t1, t2, e = T + 3 * (q & 3), T + 3 * (q & 3) + 1, T + 3 * (q & 3) + 2
        h = T + 12 + q
        L.append(f"v_fma_f32 v{t1}, -v{vM}, v{V_CS+q}, v{A+q}")
        L.append(f"v_fma_f32 v{t2}, -v{vM}, v{V_CS+8+q}, v{A+8+q}")
        L.append(f"v_mul_f32 v{e}, v{t1}, v{vA_}")
        L.append(f"v_exp_f32 v{e}, v{e}")
        L.append(f"v_mul_f32 v{t1}, v{t1}, v{t2}")
        L.append(f"v_add_f32 v{e}, 1.0, v{e}")
        L.append(f"v_rcp_f32 v{e}, v{e}")
        L.append(f"v_nop")
        L.append(f"v_mul_f32 v{h}, v{t1}, v{e}")
    for i in range(4):
        L.append(f"v_cvt_pk_bf16_f32 v{T+28+i}, v{T+12+2*i}, v{T+13+2*i}")
    return L

def h_store(a, sig):
    T = V_T
    a(f"s_add_u32 s{S_C}, s{S_SG0}, {sig}")
    a(f"s_mul_i32 s{S_C}, s{S_C}, 112")
    a(f"s_add_u32 s{S_C}, s{S_C}, s{S_TAU}")
    a(f"s_lshl_b32 s{S_D2}, s{S_C}, 10")
    a(f"s_add_u32 s{S_D2}, s{S_D2}, s{S_HF}")
    a(f"buffer_store_dwordx4 v[{T+28}:{T+31}], v{V_L16}, s[{S_WS}:{S_WS+3}], s{S_D2} offen{STORE_SC}")
    a("s_waitcnt vmcnt(0)")
    a(f"s_lshl_b32 s{S_C}, s{S_C}, 2")
    a(f"s_add_u32 s{S_C}, s{S_C}, s{S_HFL}")
    a(f"v_mov_b32 v{T}, 1")
    a(f"v_mov_b32 v{T+1}, s{S_C}")
    a(f"s_mov_b64 s[86:87], exec")
    a(f"s_mov_b64 exec, 1")
    a(f"buffer_store_dword v{T}, v{T+1}, s[{S_WS}:{S_WS+3}], 0 offen{STORE_SC}")
    a(f"s_mov_b64 exec, s[86:87]")

def p2_pass(a, sig):
    A = V_ACC + 16 * (sig & 1)
    NB = 6
    base = XRING + (sig & 3) * SLOT
    a(f"v_add_u32 v{V_XB}, {base}, v{V_L16}")
    def rd(k): return f"ds_read_b128 v[{V_RING+4*(k%NB)}:{V_RING+4*(k%NB)+3}], v{V_XB} offset:{k*1024}"
    for k in range(NB - 1): a(rd(k))
    for k in range(28):
        if k + NB - 1 < 28:
            a(rd(k + NB - 1))
            a(f"s_waitcnt lgkmcnt({NB-1})")
        else:
            a(f"s_waitcnt lgkmcnt({27-k})")
        src = "0" if k == 0 else f"v[{A}:{A+15}]"
        a(f"v_mfma_f32_32x32x16_bf16 v[{A}:{A+15}], {WGU(k)}, v[{V_RING+4*(k%NB)}:{V_RING+4*(k%NB)+3}], {src}")

def p2_phase(a):
    a(f"v_and_b32 v{V_A2}, 31, v0")
    a(f"v_lshlrev_b32 v{V_A2}, 4, v{V_A2}")
    a(f"v_add_u32 v{V_A2}, {STAT}, v{V_A2}")
    for sig in range(3):
        p2_prefetch(a, sig)
    for sig in range(8):
        a("s_waitcnt vmcnt(0) lgkmcnt(0)")
        a("s_barrier")
        if sig + 3 < 8:
            p2_prefetch(a, sig + 3)
        p2_pass(a, sig)
        for ln in epi_list(sig): a(ln)
        h_store(a, sig)

def p3_sub(a, sub):
    NB = 12
    a(f"s_add_u32 s{S_C}, s{S_SG0}, s{S_SQ}")
    if sub: a(f"s_add_u32 s{S_C}, s{S_C}, 4")
    a(f"s_mul_i32 s{S_C}, s{S_C}, 112")
    a(f"s_mul_i32 s{S_D2}, s{S_W}, 28")
    a(f"s_add_u32 s{S_C}, s{S_C}, s{S_D2}")
    a(f"s_lshl_b32 s{S_D2}, s{S_C}, 2")
    a(f"s_add_u32 s{S_D2}, s{S_D2}, s{S_HFL}")
    a(f"v_lshlrev_b32 v{V_A1}, 2, v0")
    a(f"v_add_u32 v{V_A1}, s{S_D2}, v{V_A1}")
    poll_flags(a, V_A1, 28, 8)
    a(f"s_lshl_b32 s{S_C}, s{S_C}, 10")
    a(f"s_add_u32 s{S_C}, s{S_C}, s{S_HF}")
    def ld(k):
        a(f"s_add_u32 s{S_D2}, s{S_C}, {(k//4)*4096}")
        a(f"buffer_load_dwordx4 v[{V_RING+4*(k%NB)}:{V_RING+4*(k%NB)+3}], v{V_L16}, s[{S_WS}:{S_WS+3}], s{S_D2} offen offset:{(k%4)*1024}")
    for k in range(NB - 1): ld(k)
    for k in range(28):
        if k + NB - 1 < 28:
            ld(k + NB - 1)
            a(f"s_waitcnt vmcnt({NB-1})")
        else:
            a(f"s_waitcnt vmcnt({27-k})")
        for dt in range(2):
            A = V_ACC + 16 * dt
            src = "0" if k == 0 else f"v[{A}:{A+15}]"
            a(f"v_mfma_f32_32x32x16_bf16 v[{A}:{A+15}], {WD(dt,k)}, v[{V_RING+4*(k%NB)}:{V_RING+4*(k%NB)+3}], {src}")
    a("s_barrier")
    a(f"s_lshl_b32 s{S_A}, s{S_W}, 12")
    a(f"s_add_u32 s{S_A}, s{S_A}, {RED}")
    a(f"v_add_u32 v{V_A0}, s{S_A}, v{V_L16}")
    for dt in range(2):
        lab = a.newlabel("RD")
        a(f"s_cmp_eq_u32 s{S_W}, {2*sub+dt}")
        a(f"s_cbranch_scc1 {lab}")
        for c in range(4):
            a(f"ds_write_b128 v{V_A0}, v[{V_ACC+16*dt+4*c}:{V_ACC+16*dt+4*c+3}] offset:{dt*16384 + c*1024}")
        a.label(lab)
    a("s_waitcnt lgkmcnt(0)")
    a("s_barrier")
    for dt in range(2):
        lab = a.newlabel("RD")
        own = 2 * sub + dt
        a(f"s_cmp_eq_u32 s{S_W}, {own}")
        a(f"s_cbranch_scc0 {lab}")
        a(f"v_add_u32 v{V_A0}, {RED + dt*16384}, v{V_L16}")
        others = [w for w in range(4) if w != own]
        for n, w in enumerate(others):
            for c in range(4):
                a(f"ds_read_b128 v[{V_RING+16*n+4*c}:{V_RING+16*n+4*c+3}], v{V_A0} offset:{w*4096 + c*1024}")
        a("s_waitcnt lgkmcnt(0)")
        for i in range(16):
            a(f"v_add_f32 v{V_OWNR+i}, v{V_ACC+16*dt+i}, v{V_RING+i}")
            a(f"v_add_f32 v{V_RING+16+i}, v{V_RING+16+i}, v{V_RING+32+i}")
            a(f"v_add_f32 v{V_OWNR+i}, v{V_OWNR+i}, v{V_RING+16+i}")
        a.label(lab)

def resid_add(a):
    X = V_OWNR
    a(f"s_sub_u32 s{S_A}, s{S_SOWN}, s{S_SG0}")
    a(f"s_lshl_b32 s{S_A}, s{S_A}, 9")
    a(f"s_add_u32 s{S_A}, s{S_A}, {STAT + 8}")
    a(f"v_and_b32 v{V_A3}, 31, v0")
    a(f"v_lshlrev_b32 v{V_A3}, 4, v{V_A3}")
    a(f"v_add_u32 v{V_A3}, s{S_A}, v{V_A3}")
    a(f"ds_read_b32 v{V_T}, v{V_A3}")
    a("s_waitcnt lgkmcnt(0)")
    t = V_T + 2
    for i in range(8):
        a(f"v_mul_f32 v{X+2*i}, v{X+2*i}, v{V_T}")
        a(f"v_mul_f32 v{X+2*i+1}, v{X+2*i+1}, v{V_T}")
        a(f"v_cvt_pk_bf16_f32 v{t}, v{X+2*i}, v{X+2*i+1}")
        a(f"v_lshlrev_b32 v{X+2*i}, 16, v{t}")
        a(f"v_and_b32 v{X+2*i+1}, s{S_MASK}, v{t}")
        a(f"v_lshlrev_b32 v{t+1}, 16, v{V_XRES+i}")
        a(f"v_and_b32 v{t+2}, s{S_MASK}, v{V_XRES+i}")
        a(f"v_add_f32 v{X+2*i}, v{X+2*i}, v{t+1}")
        a(f"v_add_f32 v{X+2*i+1}, v{X+2*i+1}, v{t+2}")
        a(f"v_cvt_pk_bf16_f32 v{V_XRES+i}, v{X+2*i}, v{X+2*i+1}")

def x1_step(a):
    X = V_OWNR
    partial_stats(a, V_T + 4)
    a(f"s_mov_b32 s{S_B}, {GS}")
    store_granule(a, V_T + 4, S_B)
    a(f"s_mul_i32 s{S_D2}, s{S_SOWN}, {14*256}")
    a(f"s_add_u32 s{S_D2}, s{S_D2}, {GS}")
    vS, vQ = V_T + 16, V_T + 17
    gather_stats(a, S_D2, 16, vS, vQ)
    stats_finish(a, vS, vQ, V_T + 18, V_T + 19, V_T + 16)
    for i in range(8):
        a(f"v_lshlrev_b32 v{X+2*i}, 16, v{V_XRES+i}")
        a(f"v_and_b32 v{X+2*i+1}, s{S_MASK}, v{V_XRES+i}")
    gate_step(a, X, V_T + 18, V_T + 19)
    set_phi(a, 1)
    publish_x(a, X, 32)

def final_store(a):
    a(f"v_and_b32 v{V_T}, 31, v0")
    a(f"s_lshl_b32 s{S_A}, s{S_SOWN}, 5")
    a(f"v_add_u32 v{V_T}, s{S_A}, v{V_T}")
    a(f"v_mul_u32_u24 v{V_A0}, 896, v{V_T}")
    a(f"v_lshrrev_b32 v{V_T+1}, 5, v0")
    a(f"v_lshl_add_u32 v{V_A0}, v{V_T+1}, 3, v{V_A0}")
    a(f"s_lshl_b32 s{S_A}, s{S_DT}, 6")
    for k in range(4):
        a(f"buffer_store_dwordx2 v[{V_XRES+2*k}:{V_XRES+2*k+1}], v{V_A0}, s[{S_OUT}:{S_OUT+3}], s{S_A} offen offset:{16*k}")

def gen_kb(a, variant):
    prologue(a)
    a("s_cmp_ge_u32 s2, 224")
    a("s_cbranch_scc1 KB_done")
    roles(a)
    conv_issue(a)
    if variant != "conv":
        wgu_issue(a)
    conv_main(a, 28 if variant != "conv" else 0)
    st(a, 2)
    conv_epilogue(a)
    st(a, 3)
    if variant != "conv":
        wgu_read(a)
        a("s_barrier")
        wd_issue(a, 0)
        x0_loads(a)
        x0_y(a)
        wd_read(a, 0)
        wd_issue(a, 1)
        set_phi(a, 0)
        x0_compute(a)
        st(a, 4, late=True)
        wd_read(a, 1)
        a("s_barrier")
        st(a, 5, late=True)
        a.label("KB_ffn")
        p2_phase(a)
        st(a, 6, late=True, phi=True)
        p3_sub(a, 0)
        p3_sub(a, 1)
        resid_add(a)
        a(f"s_cmp_eq_u32 s{S_PHI}, 1")
        a("s_cbranch_scc1 KB_final")
        st(a, 7, late=True, phi=True)
        x1_step(a)
        a("s_barrier")
        st(a, 8, late=True, phi=True)
        a("s_branch KB_ffn")
        a.label("KB_final")
        final_store(a)
        st(a, 9, late=True, phi=True)
        lab = a.newlabel("ER")
        a(f"s_cmp_eq_u32 s{S_ERR}, 0")
        a(f"s_cbranch_scc1 {lab}")
        a("s_load_dwordx2 s[4:5], s[0:1], 88")
        a("s_waitcnt lgkmcnt(0)")
        a(f"v_mov_b32 v2, s{S_ERR}")
        a("v_mov_b32 v3, 0")
        a("global_atomic_or v3, v2, s[4:5]")
        a.label(lab)
    a.label("KB_done")
    a("s_endpgm")

KB_DESC = """
.amdhsa_kernel main_kernel
  .amdhsa_next_free_vgpr 512
  .amdhsa_next_free_sgpr 96
  .amdhsa_accum_offset 256
  .amdhsa_group_segment_fixed_size 0
  .amdhsa_kernarg_size 104
  .amdhsa_user_sgpr_count 2
  .amdhsa_user_sgpr_kernarg_segment_ptr 1
  .amdhsa_system_sgpr_workgroup_id_x 1
  .amdhsa_float_denorm_mode_32 3
  .amdhsa_float_denorm_mode_16_64 3
.end_amdhsa_kernel
"""
```

```python
UR0  = 0x000000
UR1  = 0x1C0000
YT   = 0x380000
XF0  = 0x540000
XF1  = 0x700000
HF0  = 0x8C0000
HF1  = 0xFC0000
ST0  = 0x16C0000
SYNC = 0x16D0000
GX0  = SYNC
GX1  = SYNC + 0x38000
GS   = SYNC + 0x70000
HFL  = SYNC + 0xA8000
CFL  = SYNC + 0xB6000
SYNC_BYTES = 0xC0000
TICK = SYNC + SYNC_BYTES
WS_USED = TICK + 0x1000
WS_BYTES = 268435456
XBYTES = 2048 * 448 * 2
WBYTES = 448 * 1792 * 2
KA = dict(q=0, k=8, v=16, shift=24, h=32, D=40, bx=48, wg=56, wu=64, wd=72, out=80, dbg=88, ws=96)
TS = 0x2000000
WS_USED_DBG = TS + 2 * 512 * 256
```

```python
import sys, importlib
sys.path.insert(0, "gen")
from asmlib import Asm, pad_hazards
import k0
from layout import *

HEADER = open("interleave_layers__ssm_conv_h3__swiglu_ffn__prompt.s.ref").read().split("; Override launch geometry")[0]

def build(variant="full"):
    launches = []
    kernels = []
    descs = []
    a = Asm()
    k0.gen_k0(a)
    launches.append(f"; @launch kernel=prep_kernel grid=({k0.NWG0},1,1) block=(256,1,1) lds=16384")
    kernels.append(("prep_kernel", a)); descs.append(k0.K0_DESC)
    if variant != "k0":
        import kb
        b = Asm()
        kb.gen_kb(b, variant)
        launches.append(f"; @launch kernel=main_kernel grid=({kb.NWG},1,1) block=(256,1,1) lds={kb.LDS_BYTES}")
        kernels.append(("main_kernel", b)); descs.append(kb.KB_DESC)
    out = HEADER + "\n".join(launches) + "\n"
    out += '.amdgcn_target "amdgcn-amd-amdhsa--gfx950"\n.text\n'
    for name, asm in kernels:
        items, added = pad_hazards(asm.items)
        asm.items = items
        print(f"; {name}: {sum(1 for i in items if not i.endswith(':') and not i.startswith(';'))} instrs, {added} nop states added", file=sys.stderr)
        out += f".globl {name}\n.p2align 8\n.type {name},@function\n" + asm.text()
    out += '.section .rodata,"a"\n.p2align 6\n'
    for d in descs:
        out += d.strip("\n") + "\n.p2align 6\n"
    return out

if __name__ == "__main__":
    variant = sys.argv[1] if len(sys.argv) > 1 else "full"
    dst = sys.argv[2] if len(sys.argv) > 2 else "out.s"
    open(dst, "w").write(build(variant))
    print("wrote", dst, file=sys.stderr)
```
